```python
import torch

def _softmax(x, axis=-1):
    return torch.softmax(x, dim=axis)

def _gelu(x):
    return torch.nn.functional.gelu(x, approximate='tanh')

def _silu(x):
    return torch.nn.functional.silu(x)

def _sigmoid(x):
    return torch.sigmoid(x)

def _layernorm(x, axis=-1, eps=1e-05):
    m = x.mean(dim=axis, keepdim=True)
    v = x.var(dim=axis, keepdim=True, unbiased=False)
    return (x - m) / torch.sqrt(v + eps)

def _scatter_add(tgt, idx, src, axis=0):
    return tgt.clone().index_add_(axis, idx, src)

def _segment_sum(src, seg, n):
    out = torch.zeros((n,) + src.shape[1:], dtype=src.dtype)
    return out.index_add_(0, seg, src)

def _pad(x, pw):
    flat = tuple((v for pair in reversed(pw) for v in pair))
    return torch.nn.functional.pad(x, flat)
kernel_name = 'standalone__tree_speculative_verify_tree_attention_over_candidate_token_tree__decode'

def setup_inputs():

    _w = lambda a: (lambda t: t.to(torch.bfloat16) if t.is_floating_point() else t)(torch.as_tensor(a))
    B, Hq, Hkv, T, C, D = (2, 32, 8, 1, 8192, 128)
    tree_mask = torch.zeros((B, T, T), dtype=float)
    for b in range(B):
        parent = torch.zeros(T, dtype=torch.int64)
        for i in range(1, T):
            parent[i] = int(torch.randint(0, i, (1,)).item())
        for i in range(T):
            j = i
            tree_mask[b, i, j] = 1.0
            while j > 0:
                j = parent[j]
                tree_mask[b, i, j] = 1.0
    return {'q': _w((lambda *s: torch.randn(*s, dtype=torch.bfloat16) * 0.8)(B, Hq, T, D)), 'k_cache': _w((lambda *s: torch.randn(*s, dtype=torch.bfloat16) * 0.8)(B, Hkv, C, D)), 'v_cache': _w((lambda *s: torch.randn(*s, dtype=torch.bfloat16) * 0.05)(B, Hkv, C, D)), 'k_tree': _w((lambda *s: torch.randn(*s, dtype=torch.bfloat16) * 0.8)(B, Hkv, T, D)), 'v_tree': _w((lambda *s: torch.randn(*s, dtype=torch.bfloat16) * 0.05)(B, Hkv, T, D)), 'tree_mask': _w(tree_mask)}

def reference(q, k_cache, v_cache, k_tree, v_tree, tree_mask):
    B, Hq, T, D = q.shape
    Hkv, C = (k_cache.shape[1], k_cache.shape[2])
    rep = Hq // Hkv
    kc = (lambda x, n, axis: torch.repeat_interleave(x, n, dim=axis))(k_cache, rep, axis=1)
    vc = (lambda x, n, axis: torch.repeat_interleave(x, n, dim=axis))(v_cache, rep, axis=1)
    kt = (lambda x, n, axis: torch.repeat_interleave(x, n, dim=axis))(k_tree, rep, axis=1)
    vt = (lambda x, n, axis: torch.repeat_interleave(x, n, dim=axis))(v_tree, rep, axis=1)
    k = torch.concatenate([kc, kt], axis=2)
    v = torch.concatenate([vc, vt], axis=2)
    scale = D ** (-0.5)
    scores = torch.einsum('bhqd,bhkd->bhqk', q, k) * scale
    ctx_mask = torch.ones((B, 1, T, C), dtype=scores.dtype)
    tm = tree_mask[:, None, :, :].clone()
    full_mask = torch.concatenate([ctx_mask, tm], axis=-1)
    scores = scores + (1.0 - full_mask) * -1000000000.0
    p = _softmax(scores, axis=-1)
    return torch.einsum('bhqk,bhkd->bhqd', p, v)
```

```python
class Asm:
    def __init__(self):
        self.lines = []
        self.vm = []
    def e(self, s):
        self.lines.append("    " + s)
    def c(self, s):
        self.lines.append("    ; " + s)
    def label(self, s):
        self.lines.append(s + ":")
    def raw(self, s):
        self.lines.append(s)
    def vmop(self, s, tag):
        self.e(s)
        self.vm.append(tag)
    def wait_vm(self, tag):
        idx = max(i for i, t in enumerate(self.vm) if t == tag)
        n = len(self.vm) - 1 - idx
        assert n <= 63, (tag, n)
        self.e(f"s_waitcnt vmcnt({n})")
    def nop(self, n):
        while n > 0:
            k = min(n, 16)
            self.e(f"s_nop {k-1}")
            n -= k
    def text(self):
        return "\n".join(self.lines) + "\n"

def vr(a, n=1):
    return f"v{a}" if n == 1 else f"v[{a}:{a+n-1}]"
def ar(a, n=1):
    return f"a{a}" if n == 1 else f"a[{a}:{a+n-1}]"
def sr(a, n=1):
    return f"s{a}" if n == 1 else f"s[{a}:{a+n-1}]"

def kdesc(name, vgpr, accum, sgpr=96, extra=""):
    return f""".p2align 6
.amdhsa_kernel {name}
  .amdhsa_next_free_vgpr {vgpr}
  .amdhsa_next_free_sgpr {sgpr}
  .amdhsa_accum_offset {accum}
  .amdhsa_group_segment_fixed_size 0
  .amdhsa_kernarg_size 72
  .amdhsa_user_sgpr_count 2
  .amdhsa_user_sgpr_kernarg_segment_ptr 1
  .amdhsa_system_sgpr_workgroup_id_x 1
{extra}.end_amdhsa_kernel
"""

HEADER_COMMENTS = """; Kernarg layout for this problem (72 bytes, ptrs only, base s[0:1]):
"""
NAME = "standalone__tree_speculative_verify_tree_attention_over_candidate_token_tree__decode"
```

```python
import sys, math, struct
from asmlib import *

def f2u(x):
    return struct.unpack("<I", struct.pack("<f", x))[0]

def gen(NW=4, NV_EARLY=None, nt=False):
    G = 128 // NW
    WCH = 131072 // NW
    WSHIFT = WCH.bit_length() - 1
    NT = " nt" if nt else ""
    A = Asm()
    vTID, vK, vV, vQ = 0, 1, 2, 3
    vM0, vM1 = 4, 5
    vMAX, vL = 6, 7
    vQO = 8
    vACC = 12
    vD = 20
    vT = 36
    vKD = 40
    NG = G + 1
    nV = vKD + 4 * NG
    accum = (nV + 3) // 4 * 4
    total = accum + 4 * NG
    LDS_MX, LDS_LS, LDS_MF, LDS_O = 0, 256, 512, 528
    lds_bytes = 528 + NW * 2048
    CSC = (128 ** -0.5) * math.log2(math.e)

    def KD(n): return vKD + 4 * n
    def VD(n): return 4 * n

    k1 = "attn_part_kernel"
    k2 = "attn_comb_kernel"
    out = HEADER_COMMENTS
    out += f"; @launch kernel={k1} grid=(256,1,1) block=({NW*64},1,1) lds={lds_bytes}\n"
    out += f"; @launch kernel={k2} grid=(16,1,1) block=(256,1,1) lds=0\n"
    out += '.amdgcn_target "amdgcn-amd-amdhsa--gfx950"\n.text\n'
    A.raw(f".globl {k1}\n.p2align 8\n.type {k1},@function\n{k1}:")
    e = A.e
    e("s_cmp_ge_u32 s2, 256")
    e("s_cbranch_scc1 L_end1")
    e("s_load_dwordx16 s[16:31], s[0:1], 0")
    e("s_load_dwordx2 s[32:33], s[0:1], 64")
    e(f"v_and_b32 v36, 63, v0")
    e(f"v_lshrrev_b32 v37, 6, v0")
    e(f"v_lshlrev_b32 v35, {WSHIFT}, v37")
    e(f"v_lshl_add_u32 v{vV}, v36, 4, v35")
    e(f"v_bfe_u32 v38, v36, 2, 2")
    e(f"v_lshrrev_b32 v39, 4, v36")
    e(f"v_and_b32 v34, 3, v36")
    e(f"v_lshlrev_b32 v{vK}, 8, v38")
    e(f"v_lshl_add_u32 v{vK}, v39, 6, v{vK}")
    e(f"v_lshl_add_u32 v{vK}, v34, 4, v{vK}")
    e(f"v_add_u32 v{vK}, v{vK}, v35")
    e(f"v_lshlrev_b32 v{vQ}, 8, v34")
    e(f"v_lshl_add_u32 v{vQ}, v39, 6, v{vQ}")
    e(f"v_lshl_add_u32 v{vQ}, v38, 4, v{vQ}")
    for k in range(1, G // 4):
        e(f"s_movk_i32 s{48+k}, {4096*k}" if 4096*k < 32768 else f"s_mov_b32 s{48+k}, {4096*k}")
    e("s_lshl_b32 s3, s2, 17")
    e("s_lshr_b32 s34, s2, 4")
    e("s_waitcnt lgkmcnt(0)")
    e("s_add_u32 s8, s18, s3")
    e("s_addc_u32 s9, s19, 0")
    e("s_mov_b32 s10, 0x20000")
    e("s_mov_b32 s11, 0x20000")
    e("s_lshl_b32 s35, s34, 10")
    e("s_add_u32 s4, s16, s35")
    e("s_addc_u32 s5, s17, 0")
    e("s_movk_i32 s6, 1024")
    e("s_mov_b32 s7, 0x20000")
    e("s_lshl_b32 s35, s34, 8")
    e("s_add_u32 s36, s22, s35")
    e("s_addc_u32 s37, s23, 0")
    e("s_movk_i32 s38, 256")
    e("s_mov_b32 s39, 0x20000")
    def soff(n):
        k = n // 4
        return "0" if k == 0 else f"s{48+k}"
    A.vmop(f"buffer_load_dwordx4 {vr(vQO,4)}, v{vQ}, s[4:7], 0 offen", "Q")
    A.vmop(f"buffer_load_dwordx4 {vr(KD(G),4)}, v{vK}, s[36:39], 0 offen", f"K{G}")
    for n in range(G):
        A.vmop(f"buffer_load_dwordx4 {vr(KD(n),4)}, v{vK}, s[8:11], {soff(n)} offen offset:{(n%4)*1024}{NT}", f"K{n}")
    e("s_add_u32 s12, s20, s3")
    e("s_addc_u32 s13, s21, 0")
    e("s_mov_b32 s14, 0x20000")
    e("s_mov_b32 s15, 0x20000")
    e("s_add_u32 s40, s24, s35")
    e("s_addc_u32 s41, s25, 0")
    e("s_movk_i32 s42, 256")
    e("s_mov_b32 s43, 0x20000")
    A.vmop(f"buffer_load_dwordx4 {ar(VD(G),4)}, v{vV}, s[40:43], 0 offen", f"V{G}")
    vnext = [0]
    def issue_v(cnt):
        for _ in range(cnt):
            n = vnext[0]
            if n >= G: return
            A.vmop(f"buffer_load_dwordx4 {ar(VD(n),4)}, v{vV}, s[12:15], {soff(n)} offen offset:{(n%4)*1024}{NT}", f"V{n}")
            vnext[0] += 1
    nve = NV_EARLY if NV_EARLY is not None else min(G, 63 - 3 - G)
    issue_v(nve)
    e("s_load_dword s60, s[26:27], 0")
    e("s_mov_b32 s44, s32")
    e("s_mov_b32 s45, s33")
    e("s_mov_b32 s46, 0x200000")
    e("s_mov_b32 s47, 0x20000")
    e(f"v_and_b32 v{vM0}, 1, v38")
    e(f"v_lshlrev_b32 v{vM0}, 4, v{vM0}")
    e(f"v_mov_b32 v{vM1}, 0xffff")
    e(f"v_lshlrev_b32 v{vM0}, v{vM0}, v{vM1}")
    e(f"v_cmp_le_u32 vcc, 2, v38")
    A.nop(2)
    e(f"v_cndmask_b32 v{vM1}, 0, v{vM0}, vcc")
    e(f"v_xor_b32 v{vM0}, v{vM0}, v{vM1}")
    e("v_cmp_gt_u32 vcc, 16, v0")
    e("s_and_b32 s3, s2, 15")
    e("s_cmp_eq_u32 s3, 0")
    e("s_cselect_b64 s[58:59], vcc, 0")
    e(f"v_lshlrev_b32 v33, {int(math.log2(NW*4))}, v34")
    e(f"v_mov_b32 v32, v33")
    e(f"v_lshl_add_u32 v33, v37, 2, v33")
    e(f"v_lshlrev_b32 v31, 11, v37")
    e(f"v_lshl_add_u32 v31, v36, 4, v31")
    e(f"v_mov_b32 v{vQ}, v33")
    e(f"v_mov_b32 v{vK}, v32") if False else None
    e(f"v_mov_b32 v39, v32")
    e(f"v_mov_b32 v38, v31")
    e("s_waitcnt lgkmcnt(0)")
    e("s_lshl_b32 s61, s60, 16")
    e("s_and_b32 s60, s60, 0xffff0000")
    e("s_cmp_ge_u32 s2, 128")
    e("s_cselect_b32 s60, s60, s61")
    e(f"v_sub_f32 v37, 1.0, s60") if False else None
    e(f"v_mov_b32 v37, s60")
    e(f"v_sub_f32 v37, 1.0, v37")
    e(f"v_mul_f32 v37, {hex(f2u(-1e9 * math.sqrt(128.0)))}, v37")
    for i in range(8):
        e(f"v_mov_b32 v{vACC+i}, 0")
    order = [G] + list(range(G))
    batches = []
    batches.append([G])
    for i in range(0, G, 4):
        batches.append(list(range(i, i + 4)))
    first = True
    for bi, b in enumerate(batches):
        A.wait_vm(f"K{b[-1]}")
        for i, n in enumerate(b):
            e(f"v_mfma_f32_16x16x32_bf16 {vr(vD+4*i,4)}, {vr(KD(n),4)}, {vr(vQO,4)}, 0")
        if vnext[0] < G:
            issue_v(4)
        A.nop(8)
        for i, n in enumerate(b):
            d = vD + 4 * i
            for j in (1, 2, 3):
                e(f"v_mov_b32_dpp v{d}, v{d+j} quad_perm:[0,1,2,3] row_mask:0xf bank_mask:{hex(1<<j)}")
        if len(b) == 1: A.nop(2)
        for i, n in enumerate(b):
            d = vD + 4 * i
            e(f"v_add_f32_dpp v{d+1}, v{d}, v{d} row_ror:8 row_mask:0xf bank_mask:0xf")
        if len(b) < 3: A.nop(2)
        for i, n in enumerate(b):
            d = vD + 4 * i
            e(f"v_add_f32_dpp v{KD(n)}, v{d+1}, v{d+1} row_ror:4 row_mask:0xf bank_mask:0xf")
        if b == [G]:
            e(f"v_add_f32 v{KD(G)}, v{KD(G)}, v37")
            e(f"v_mov_b32 v36, 0xf149f2ca")
            e(f"v_cndmask_b32 v{KD(G)}, v36, v{KD(G)}, s[58:59]")
            e(f"v_mov_b32 v{vMAX}, v{KD(G)}")
        else:
            e(f"v_max3_f32 v{vMAX}, v{KD(b[0])}, v{KD(b[1])}, v{vMAX}")
            e(f"v_max3_f32 v{vMAX}, v{KD(b[2])}, v{KD(b[3])}, v{vMAX}")
    issue_v(G)
    e(f"v_mov_b32 v36, v{vMAX}")
    A.nop(2)
    e(f"v_permlane32_swap_b32 v{vMAX}, v36")
    A.nop(1)
    e(f"v_max_f32 v{vMAX}, v{vMAX}, v36")
    e(f"v_mov_b32 v36, v{vMAX}")
    A.nop(2)
    e(f"v_permlane16_swap_b32 v{vMAX}, v36")
    A.nop(1)
    e(f"v_max_f32 v{vMAX}, v{vMAX}, v36")
    e(f"ds_write_b32 v{vQ}, v{vMAX} offset:{LDS_MX}")
    e("s_waitcnt lgkmcnt(0)")
    e("s_barrier")
    for i in range(NW // 4):
        e(f"ds_read_b128 {vr(vD+4*i,4)}, v39 offset:{LDS_MX+16*i}")
    e("s_waitcnt lgkmcnt(0)")
    e(f"v_max3_f32 v{vMAX}, v{vD}, v{vD+1}, v{vD+2}")
    e(f"v_max_f32 v{vMAX}, v{vMAX}, v{vD+3}")
    for i in range(1, NW // 4):
        e(f"v_max3_f32 v{vMAX}, v{vD+4*i}, v{vD+4*i+1}, v{vMAX}")
        e(f"v_max3_f32 v{vMAX}, v{vD+4*i+2}, v{vD+4*i+3}, v{vMAX}")
    e(f"s_mov_b32 s62, {hex(f2u(CSC))}")
    e(f"v_mul_f32 v{vMAX}, s62, v{vMAX}")
    e(f"v_and_b32 v36, 3, v0")
    e(f"v_lshlrev_b32 v36, 2, v36")
    e(f"ds_write_b32 v36, v{vMAX} offset:{LDS_MF}")
    e(f"v_mov_b32 v{vL}, 0")
    allg = [G] + list(range(G))
    for i0 in range(0, len(allg), 4):
        b = allg[i0:i0+4]
        for n in b:
            e(f"v_fma_f32 v{KD(n)}, v{KD(n)}, s62, -v{vMAX}")
        for n in b:
            e(f"v_exp_f32 v{KD(n)}, v{KD(n)}")
        if len(b) < 2: A.nop(1)
        for n in b:
            e(f"v_cvt_pk_bf16_f32 v{KD(n)+1}, v{KD(n)}, v{KD(n)}")
        for n in b:
            e(f"v_add_f32 v{vL}, v{vL}, v{KD(n)}")
        for n in b:
            e(f"v_and_b32 v{KD(n)+2}, v{KD(n)+1}, v{vM0}")
            e(f"v_and_b32 v{KD(n)+3}, v{KD(n)+1}, v{vM1}")
    e(f"v_mov_b32 v36, v{vL}")
    A.nop(2)
    e(f"v_permlane32_swap_b32 v{vL}, v36")
    A.nop(1)
    e(f"v_add_f32 v{vL}, v{vL}, v36")
    e(f"v_mov_b32 v36, v{vL}")
    A.nop(2)
    e(f"v_permlane16_swap_b32 v{vL}, v36")
    A.nop(1)
    e(f"v_add_f32 v{vL}, v{vL}, v36")
    e(f"ds_write_b32 v{vQ}, v{vL} offset:{LDS_LS}")
    for n in allg:
        A.wait_vm(f"V{n}")
        e(f"v_mfma_f32_16x16x16_bf16 {vr(vACC,4)}, {vr(KD(n)+2,2)}, {ar(VD(n),2)}, {vr(vACC,4)}")
        e(f"v_mfma_f32_16x16x16_bf16 {vr(vACC+4,4)}, {vr(KD(n)+2,2)}, {ar(VD(n)+2,2)}, {vr(vACC+4,4)}")
    A.nop(8)
    e(f"ds_write_b128 v38, {vr(vACC,4)} offset:{LDS_O}")
    e(f"ds_write_b128 v38, {vr(vACC+4,4)} offset:{LDS_O+1024}")
    e("s_waitcnt lgkmcnt(0)")
    e("s_barrier")
    if NW > 4:
        e("v_cmp_gt_u32 vcc, 256, v0") if False else None
        e("v_readfirstlane_b32 s3, v0")
        A.nop(4)
        e("s_cmp_ge_u32 s3, 256")
        e("s_cbranch_scc1 L_end1")
    e(f"v_lshlrev_b32 v1, 3, v0")
    e(f"v_and_b32 v3, 1, v0")
    e(f"v_lshlrev_b32 v2, {int(math.log2(NW*8))}, v3")
    e(f"v_lshlrev_b32 v3, 3, v3")
    base = 8
    for w in range(NW):
        e(f"ds_read_b64 {vr(base+2*w,2)}, v1 offset:{LDS_O+2048*w}")
    lb = 40
    for i in range(NW // 2):
        e(f"ds_read_b128 {vr(lb+4*i,4)}, v2 offset:{LDS_LS+16*i}")
    mb = 72 if NW == 16 else 40 + 2 * NW
    e(f"ds_read_b64 {vr(mb,2)}, v3 offset:{LDS_MF}")
    e("s_waitcnt lgkmcnt(0)")
    for w in range(1, NW):
        e(f"v_add_f32 v{base}, v{base}, v{base+2*w}")
        e(f"v_add_f32 v{base+1}, v{base+1}, v{base+2*w+1}")
    for w in range(1, NW):
        e(f"v_add_f32 v{lb}, v{lb}, v{lb+w}")
        e(f"v_add_f32 v{lb+NW}, v{lb+NW}, v{lb+NW+w}")
    e(f"v_rcp_f32 v4, v{lb}")
    e(f"v_rcp_f32 v5, v{lb+NW}")
    e(f"v_log_f32 v6, v{lb}")
    e(f"v_log_f32 v7, v{lb+NW}")
    A.nop(1)
    e(f"v_mul_f32 v4, v{base}, v4")
    e(f"v_mul_f32 v5, v{base+1}, v5")
    e(f"v_add_f32 v6, v6, v{mb}")
    e(f"v_add_f32 v7, v7, v{mb+1}")
    e("s_lshl_b32 s3, s2, 11")
    e(f"buffer_store_dwordx2 v[4:5], v1, s[44:47], s3 offen")
    e("s_lshl_b32 s3, s2, 4")
    e("s_add_u32 s3, s3, 0x100000")
    e("v_cmp_gt_u32 vcc, 2, v0")
    e("s_and_saveexec_b64 s[56:57], vcc")
    e("s_cbranch_execz L_end1")
    e(f"buffer_store_dwordx2 v[6:7], v3, s[44:47], s3 offen")
    A.label("L_end1")
    e("s_endpgm")

    B = Asm()
    B.raw(f".globl {k2}\n.p2align 8\n.type {k2},@function\n{k2}:")
    e = B.e
    e("s_cmp_ge_u32 s2, 16")
    e("s_cbranch_scc1 L_end2")
    e("s_load_dwordx2 s[4:5], s[0:1], 64")
    e("s_load_dwordx2 s[6:7], s[0:1], 48")
    e("v_lshlrev_b32 v1, 3, v0")
    e("v_and_b32 v2, 1, v0")
    e("v_lshlrev_b32 v3, 3, v2")
    for k in range(1, 8):
        e(f"s_movk_i32 s{20+k}, {4096*k}")
    e("s_lshl_b32 s3, s2, 15")
    e("s_waitcnt lgkmcnt(0)")
    e("s_add_u32 s8, s4, s3")
    e("s_addc_u32 s9, s5, 0")
    e("s_mov_b32 s10, 32768")
    e("s_mov_b32 s11, 0x20000")
    e("s_lshl_b32 s3, s2, 8")
    e("s_add_u32 s3, s3, 0x100000")
    e("s_add_u32 s12, s4, s3")
    e("s_addc_u32 s13, s5, 0")
    e("s_movk_i32 s14, 256")
    e("s_mov_b32 s15, 0x20000")
    for s in range(16):
        e(f"buffer_load_dwordx2 v[{40+2*s}:{41+2*s}], v3, s[12:15], 0 offen offset:{16*s}")
    for s in range(16):
        so = "0" if s < 2 else f"s{20+s//2}"
        e(f"buffer_load_dwordx2 v[{8+2*s}:{9+2*s}], v1, s[8:11], {so} offen offset:{2048*(s%2)}")
    e("s_lshl_b32 s3, s2, 10")
    e("s_add_u32 s16, s6, s3")
    e("s_addc_u32 s17, s7, 0")
    e("s_movk_i32 s18, 1024")
    e("s_mov_b32 s19, 0x20000")
    e("v_lshlrev_b32 v4, 9, v2")
    e("v_bfe_u32 v5, v0, 1, 4")
    e("v_lshl_add_u32 v4, v5, 4, v4")
    e("v_lshrrev_b32 v5, 7, v0")
    e("v_lshl_add_u32 v4, v5, 3, v4")
    e("v_bfe_u32 v5, v0, 5, 2")
    e("v_lshl_add_u32 v4, v5, 1, v4")
    e("s_waitcnt vmcnt(16)")
    e("v_mov_b32 v72, v40")
    e("v_mov_b32 v73, v41")
    for s in range(1, 16):
        e(f"v_max_f32 v72, v72, v{40+2*s}")
        e(f"v_max_f32 v73, v73, v{41+2*s}")
    for s in range(16):
        e(f"v_sub_f32 v{40+2*s}, v{40+2*s}, v72")
        e(f"v_sub_f32 v{41+2*s}, v{41+2*s}, v73")
    for s in range(16):
        e(f"v_exp_f32 v{40+2*s}, v{40+2*s}")
        e(f"v_exp_f32 v{41+2*s}, v{41+2*s}")
    e("s_waitcnt vmcnt(0)")
    e("v_mov_b32 v74, v40")
    e("v_mov_b32 v75, v41")
    e("v_mul_f32 v76, v40, v8")
    e("v_mul_f32 v77, v41, v9")
    for s in range(1, 16):
        e(f"v_add_f32 v74, v74, v{40+2*s}")
        e(f"v_add_f32 v75, v75, v{41+2*s}")
        e(f"v_fmac_f32 v76, v{40+2*s}, v{8+2*s}")
        e(f"v_fmac_f32 v77, v{41+2*s}, v{9+2*s}")
    e("v_rcp_f32 v74, v74")
    e("v_rcp_f32 v75, v75")
    B.nop(1)
    e("v_mul_f32 v76, v76, v74")
    e("v_mul_f32 v77, v77, v75")
    e("v_cvt_pk_bf16_f32 v76, v76, v77")
    e("buffer_store_short v76, v4, s[16:19], 0 offen")
    e("buffer_store_short_d16_hi v76, v4, s[16:19], 0 offen offset:256")
    B.label("L_end2")
    e("s_endpgm")

    lines = [l for l in A.lines if l.strip() != "None"]
    out += "\n".join(lines) + "\n" + B.text()
    out += '.section .rodata,"a"\n'
    out += kdesc(k1, total, accum, 72)
    out += kdesc(k2, 80, 80, 40)
    return out

if __name__ == "__main__":
    NW = int(sys.argv[1]) if len(sys.argv) > 1 else 4
    nt = (len(sys.argv) > 2 and sys.argv[2] == "nt")
    sys.stdout.write(gen(NW, nt=nt))
```

```python
import sys, math, struct
from asmlib import *

def f2u(x):
    return struct.unpack("<I", struct.pack("<f", x))[0]

def gen(NW=4, NV_EARLY=None, nt=False, stamps=False):
    G = 128 // NW
    WCH = 131072 // NW
    WSHIFT = WCH.bit_length() - 1
    NT = " nt" if nt else ""
    A = Asm()
    vTID, vK, vV, vQ = 0, 1, 2, 3
    vM0, vM1 = 4, 5
    vMAX, vL = 6, 7
    vQO = 8
    vACC = 12
    vD = 20
    vT = 36
    vKD = 40
    NG = G + 1
    nV = vKD + 4 * NG
    accum = (nV + 3) // 4 * 4
    total = accum + 4 * NG
    LDS_MX, LDS_LS, LDS_MF, LDS_O = 0, 256, 512, 528
    lds_bytes = 528 + NW * 2048
    CSC = (128 ** -0.5) * math.log2(math.e)

    def KD(n): return vKD + 4 * n
    def VD(n): return 4 * n

    k1 = "attn_part_kernel"
    k2 = "attn_comb_kernel"
    out = HEADER_COMMENTS
    out += f"; @launch kernel={k1} grid=(256,1,1) block=({NW*64},1,1) lds={lds_bytes}\n"
    out += f"; @launch kernel={k2} grid=(16,1,1) block=(256,1,1) lds=0\n"
    out += '.amdgcn_target "amdgcn-amd-amdhsa--gfx950"\n.text\n'
    A.raw(f".globl {k1}\n.p2align 8\n.type {k1},@function\n{k1}:")
    e = A.e
    nst = [0]
    def stamp():
        if stamps:
            e(f"s_memrealtime s[{70+2*nst[0]}:{71+2*nst[0]}]")
            nst[0] += 1
    e("s_cmp_ge_u32 s2, 256")
    e("s_cbranch_scc1 L_end1")
    stamp()
    e("s_load_dwordx16 s[16:31], s[0:1], 0")
    e("s_load_dwordx2 s[32:33], s[0:1], 64")
    e(f"v_and_b32 v36, 63, v0")
    e(f"v_lshrrev_b32 v37, 6, v0")
    e(f"v_lshlrev_b32 v35, {WSHIFT}, v37")
    e(f"v_lshl_add_u32 v{vV}, v36, 4, v35")
    e(f"v_bfe_u32 v38, v36, 2, 2")
    e(f"v_lshrrev_b32 v39, 4, v36")
    e(f"v_and_b32 v34, 3, v36")
    e(f"v_lshlrev_b32 v{vK}, 8, v38")
    e(f"v_lshl_add_u32 v{vK}, v39, 6, v{vK}")
    e(f"v_lshl_add_u32 v{vK}, v34, 4, v{vK}")
    e(f"v_add_u32 v{vK}, v{vK}, v35")
    e(f"v_lshlrev_b32 v{vQ}, 8, v34")
    e(f"v_lshl_add_u32 v{vQ}, v39, 6, v{vQ}")
    e(f"v_lshl_add_u32 v{vQ}, v38, 4, v{vQ}")
    for k in range(1, G // 4):
        e(f"s_movk_i32 s{48+k}, {4096*k}" if 4096*k < 32768 else f"s_mov_b32 s{48+k}, {4096*k}")
    e("s_lshl_b32 s3, s2, 17")
    e("s_lshr_b32 s34, s2, 4")
    e("s_waitcnt lgkmcnt(0)")
    stamp()
    e("s_add_u32 s8, s18, s3")
    e("s_addc_u32 s9, s19, 0")
    e("s_mov_b32 s10, 0x20000")
    e("s_mov_b32 s11, 0x20000")
    e("s_lshl_b32 s35, s34, 10")
    e("s_add_u32 s4, s16, s35")
    e("s_addc_u32 s5, s17, 0")
    e("s_movk_i32 s6, 1024")
    e("s_mov_b32 s7, 0x20000")
    e("s_lshl_b32 s35, s34, 8")
    e("s_add_u32 s36, s22, s35")
    e("s_addc_u32 s37, s23, 0")
    e("s_movk_i32 s38, 256")
    e("s_mov_b32 s39, 0x20000")
    def soff(n):
        k = n // 4
        return "0" if k == 0 else f"s{48+k}"
    A.vmop(f"buffer_load_dwordx4 {vr(vQO,4)}, v{vQ}, s[4:7], 0 offen", "Q")
    A.vmop(f"buffer_load_dwordx4 {vr(KD(G),4)}, v{vK}, s[36:39], 0 offen", f"K{G}")
    for n in range(G):
        A.vmop(f"buffer_load_dwordx4 {vr(KD(n),4)}, v{vK}, s[8:11], {soff(n)} offen offset:{(n%4)*1024}{NT}", f"K{n}")
    e("s_add_u32 s12, s20, s3")
    e("s_addc_u32 s13, s21, 0")
    e("s_mov_b32 s14, 0x20000")
    e("s_mov_b32 s15, 0x20000")
    e("s_add_u32 s40, s24, s35")
    e("s_addc_u32 s41, s25, 0")
    e("s_movk_i32 s42, 256")
    e("s_mov_b32 s43, 0x20000")
    A.vmop(f"buffer_load_dwordx4 {ar(VD(G),4)}, v{vV}, s[40:43], 0 offen", f"V{G}")
    vnext = [0]
    def issue_v(cnt):
        for _ in range(cnt):
            n = vnext[0]
            if n >= G: return
            A.vmop(f"buffer_load_dwordx4 {ar(VD(n),4)}, v{vV}, s[12:15], {soff(n)} offen offset:{(n%4)*1024}{NT}", f"V{n}")
            vnext[0] += 1
    nve = NV_EARLY if NV_EARLY is not None else min(G, 63 - 3 - G)
    issue_v(nve)
    stamp()
    e("s_load_dword s60, s[26:27], 0")
    e("s_mov_b32 s44, s32")
    e("s_mov_b32 s45, s33")
    e("s_mov_b32 s46, 0x200000")
    e("s_mov_b32 s47, 0x20000")
    e(f"v_and_b32 v{vM0}, 1, v38")
    e(f"v_lshlrev_b32 v{vM0}, 4, v{vM0}")
    e(f"v_mov_b32 v{vM1}, 0xffff")
    e(f"v_lshlrev_b32 v{vM0}, v{vM0}, v{vM1}")
    e(f"v_cmp_le_u32 vcc, 2, v38")
    A.nop(2)
    e(f"v_cndmask_b32 v{vM1}, 0, v{vM0}, vcc")
    e(f"v_xor_b32 v{vM0}, v{vM0}, v{vM1}")
    e("v_cmp_gt_u32 vcc, 16, v0")
    e("s_and_b32 s3, s2, 15")
    e("s_cmp_eq_u32 s3, 0")
    e("s_cselect_b64 s[58:59], vcc, 0")
    e(f"v_lshlrev_b32 v33, {int(math.log2(NW*4))}, v34")
    e(f"v_mov_b32 v32, v33")
    e(f"v_lshl_add_u32 v33, v37, 2, v33")
    e(f"v_lshlrev_b32 v31, 11, v37")
    e(f"v_lshl_add_u32 v31, v36, 4, v31")
    e(f"v_mov_b32 v{vQ}, v33")
    e(f"v_mov_b32 v{vK}, v32") if False else None
    e(f"v_mov_b32 v39, v32")
    e(f"v_mov_b32 v38, v31")
    e("s_waitcnt lgkmcnt(0)")
    e("s_lshl_b32 s61, s60, 16")
    e("s_and_b32 s60, s60, 0xffff0000")
    e("s_cmp_ge_u32 s2, 128")
    e("s_cselect_b32 s60, s60, s61")
    e(f"v_sub_f32 v37, 1.0, s60") if False else None
    e(f"v_mov_b32 v37, s60")
    e(f"v_sub_f32 v37, 1.0, v37")
    e(f"v_mul_f32 v37, {hex(f2u(-1e9 * math.sqrt(128.0)))}, v37")
    for i in range(8):
        e(f"v_mov_b32 v{vACC+i}, 0")
    order = [G] + list(range(G))
    batches = []
    batches.append([G])
    for i in range(0, G, 4):
        batches.append(list(range(i, i + 4)))
    first = True
    for bi, b in enumerate(batches):
        A.wait_vm(f"K{b[-1]}")
        if bi in (1, len(batches)-1): stamp()
        for i, n in enumerate(b):
            e(f"v_mfma_f32_16x16x32_bf16 {vr(vD+4*i,4)}, {vr(KD(n),4)}, {vr(vQO,4)}, 0")
        if vnext[0] < G:
            issue_v(4)
        A.nop(8)
        for i, n in enumerate(b):
            d = vD + 4 * i
            for j in (1, 2, 3):
                e(f"v_mov_b32_dpp v{d}, v{d+j} quad_perm:[0,1,2,3] row_mask:0xf bank_mask:{hex(1<<j)}")
        if len(b) == 1: A.nop(2)
        for i, n in enumerate(b):
            d = vD + 4 * i
            e(f"v_add_f32_dpp v{d+1}, v{d}, v{d} row_ror:8 row_mask:0xf bank_mask:0xf")
        if len(b) < 3: A.nop(2)
        for i, n in enumerate(b):
            d = vD + 4 * i
            e(f"v_add_f32_dpp v{KD(n)}, v{d+1}, v{d+1} row_ror:4 row_mask:0xf bank_mask:0xf")
        if b == [G]:
            e(f"v_add_f32 v{KD(G)}, v{KD(G)}, v37")
            e(f"v_mov_b32 v36, 0xf149f2ca")
            e(f"v_cndmask_b32 v{KD(G)}, v36, v{KD(G)}, s[58:59]")
            e(f"v_mov_b32 v{vMAX}, v{KD(G)}")
        else:
            e(f"v_max3_f32 v{vMAX}, v{KD(b[0])}, v{KD(b[1])}, v{vMAX}")
            e(f"v_max3_f32 v{vMAX}, v{KD(b[2])}, v{KD(b[3])}, v{vMAX}")
    issue_v(G)
    e(f"v_mov_b32 v36, v{vMAX}")
    A.nop(2)
    e(f"v_permlane32_swap_b32 v{vMAX}, v36")
    A.nop(1)
    e(f"v_max_f32 v{vMAX}, v{vMAX}, v36")
    e(f"v_mov_b32 v36, v{vMAX}")
    A.nop(2)
    e(f"v_permlane16_swap_b32 v{vMAX}, v36")
    A.nop(1)
    e(f"v_max_f32 v{vMAX}, v{vMAX}, v36")
    e(f"ds_write_b32 v{vQ}, v{vMAX} offset:{LDS_MX}")
    e("s_waitcnt lgkmcnt(0)")
    e("s_barrier")
    for i in range(NW // 4):
        e(f"ds_read_b128 {vr(vD+4*i,4)}, v39 offset:{LDS_MX+16*i}")
    e("s_waitcnt lgkmcnt(0)")
    e(f"v_max3_f32 v{vMAX}, v{vD}, v{vD+1}, v{vD+2}")
    e(f"v_max_f32 v{vMAX}, v{vMAX}, v{vD+3}")
    for i in range(1, NW // 4):
        e(f"v_max3_f32 v{vMAX}, v{vD+4*i}, v{vD+4*i+1}, v{vMAX}")
        e(f"v_max3_f32 v{vMAX}, v{vD+4*i+2}, v{vD+4*i+3}, v{vMAX}")
    e(f"s_mov_b32 s62, {hex(f2u(CSC))}")
    e(f"v_mul_f32 v{vMAX}, s62, v{vMAX}")
    e(f"v_and_b32 v36, 3, v0")
    e(f"v_lshlrev_b32 v36, 2, v36")
    e(f"ds_write_b32 v36, v{vMAX} offset:{LDS_MF}")
    e(f"v_mov_b32 v{vL}, 0")
    allg = [G] + list(range(G))
    for i0 in range(0, len(allg), 4):
        b = allg[i0:i0+4]
        for n in b:
            e(f"v_fma_f32 v{KD(n)}, v{KD(n)}, s62, -v{vMAX}")
        for n in b:
            e(f"v_exp_f32 v{KD(n)}, v{KD(n)}")
        if len(b) < 2: A.nop(1)
        for n in b:
            e(f"v_cvt_pk_bf16_f32 v{KD(n)+1}, v{KD(n)}, v{KD(n)}")
        for n in b:
            e(f"v_add_f32 v{vL}, v{vL}, v{KD(n)}")
        for n in b:
            e(f"v_and_b32 v{KD(n)+2}, v{KD(n)+1}, v{vM0}")
            e(f"v_and_b32 v{KD(n)+3}, v{KD(n)+1}, v{vM1}")
    e(f"v_mov_b32 v36, v{vL}")
    A.nop(2)
    e(f"v_permlane32_swap_b32 v{vL}, v36")
    A.nop(1)
    e(f"v_add_f32 v{vL}, v{vL}, v36")
    e(f"v_mov_b32 v36, v{vL}")
    A.nop(2)
    e(f"v_permlane16_swap_b32 v{vL}, v36")
    A.nop(1)
    e(f"v_add_f32 v{vL}, v{vL}, v36")
    e(f"ds_write_b32 v{vQ}, v{vL} offset:{LDS_LS}")
    stamp()
    for n in allg:
        A.wait_vm(f"V{n}")
        if n == G-1: stamp()
        e(f"v_mfma_f32_16x16x16_bf16 {vr(vACC,4)}, {vr(KD(n)+2,2)}, {ar(VD(n),2)}, {vr(vACC,4)}")
        e(f"v_mfma_f32_16x16x16_bf16 {vr(vACC+4,4)}, {vr(KD(n)+2,2)}, {ar(VD(n)+2,2)}, {vr(vACC+4,4)}")
    A.nop(8)
    e(f"ds_write_b128 v38, {vr(vACC,4)} offset:{LDS_O}")
    e(f"ds_write_b128 v38, {vr(vACC+4,4)} offset:{LDS_O+1024}")
    e("s_waitcnt lgkmcnt(0)")
    e("s_barrier")
    if NW > 4:
        e("v_cmp_gt_u32 vcc, 256, v0") if False else None
        e("v_readfirstlane_b32 s3, v0")
        A.nop(4)
        e("s_cmp_ge_u32 s3, 256")
        e("s_cbranch_scc1 L_end1")
    e(f"v_lshlrev_b32 v1, 3, v0")
    e(f"v_and_b32 v3, 1, v0")
    e(f"v_lshlrev_b32 v2, {int(math.log2(NW*8))}, v3")
    e(f"v_lshlrev_b32 v3, 3, v3")
    base = 8
    for w in range(NW):
        e(f"ds_read_b64 {vr(base+2*w,2)}, v1 offset:{LDS_O+2048*w}")
    lb = 40
    for i in range(NW // 2):
        e(f"ds_read_b128 {vr(lb+4*i,4)}, v2 offset:{LDS_LS+16*i}")
    mb = 72 if NW == 16 else 40 + 2 * NW
    e(f"ds_read_b64 {vr(mb,2)}, v3 offset:{LDS_MF}")
    e("s_waitcnt lgkmcnt(0)")
    for w in range(1, NW):
        e(f"v_add_f32 v{base}, v{base}, v{base+2*w}")
        e(f"v_add_f32 v{base+1}, v{base+1}, v{base+2*w+1}")
    for w in range(1, NW):
        e(f"v_add_f32 v{lb}, v{lb}, v{lb+w}")
        e(f"v_add_f32 v{lb+NW}, v{lb+NW}, v{lb+NW+w}")
    e(f"v_rcp_f32 v4, v{lb}")
    e(f"v_rcp_f32 v5, v{lb+NW}")
    e(f"v_log_f32 v6, v{lb}")
    e(f"v_log_f32 v7, v{lb+NW}")
    A.nop(1)
    e(f"v_mul_f32 v4, v{base}, v4")
    e(f"v_mul_f32 v5, v{base+1}, v5")
    e(f"v_add_f32 v6, v6, v{mb}")
    e(f"v_add_f32 v7, v7, v{mb+1}")
    if stamps:
        stamp()
        e("s_waitcnt lgkmcnt(0)")
        ns = nst[0]
        for i in range(ns):
            e(f"v_mov_b32 v{8+2*i}, s{70+2*i}")
            e(f"v_mov_b32 v{9+2*i}, s{71+2*i}")
        e("v_cmp_eq_u32 vcc, 0, v0")
        e("s_and_saveexec_b64 s[56:57], vcc")
        e("s_cbranch_execz L_nostamp")
        e(f"s_mul_i32 s3, s2, {ns*8}")
        e("s_add_u32 s3, s3, 0x400000")
        e("v_mov_b32 v40, 0")
        e("s_mov_b32 s46, 0x800000")
        for i in range(ns):
            e(f"buffer_store_dwordx2 v[{8+2*i}:{9+2*i}], v40, s[44:47], s3 offen offset:{8*i}")
        A.label("L_nostamp")
        e("s_mov_b64 exec, s[56:57]")
        sys.stderr.write(f"stamps: {ns}\n")
    e("s_lshl_b32 s3, s2, 11")
    e(f"buffer_store_dwordx2 v[4:5], v1, s[44:47], s3 offen")
    e("s_lshl_b32 s3, s2, 4")
    e("s_add_u32 s3, s3, 0x100000")
    e("v_cmp_gt_u32 vcc, 2, v0")
    e("s_and_saveexec_b64 s[56:57], vcc")
    e("s_cbranch_execz L_end1")
    e(f"buffer_store_dwordx2 v[6:7], v3, s[44:47], s3 offen")
    A.label("L_end1")
    e("s_endpgm")

    B = Asm()
    B.raw(f".globl {k2}\n.p2align 8\n.type {k2},@function\n{k2}:")
    e = B.e
    e("s_cmp_ge_u32 s2, 16")
    e("s_cbranch_scc1 L_end2")
    e("s_load_dwordx2 s[4:5], s[0:1], 64")
    e("s_load_dwordx2 s[6:7], s[0:1], 48")
    e("v_lshlrev_b32 v1, 3, v0")
    e("v_and_b32 v2, 1, v0")
    e("v_lshlrev_b32 v3, 3, v2")
    for k in range(1, 8):
        e(f"s_movk_i32 s{20+k}, {4096*k}")
    e("s_lshl_b32 s3, s2, 15")
    e("s_waitcnt lgkmcnt(0)")
    e("s_add_u32 s8, s4, s3")
    e("s_addc_u32 s9, s5, 0")
    e("s_mov_b32 s10, 32768")
    e("s_mov_b32 s11, 0x20000")
    e("s_lshl_b32 s3, s2, 8")
    e("s_add_u32 s3, s3, 0x100000")
    e("s_add_u32 s12, s4, s3")
    e("s_addc_u32 s13, s5, 0")
    e("s_movk_i32 s14, 256")
    e("s_mov_b32 s15, 0x20000")
    for s in range(16):
        e(f"buffer_load_dwordx2 v[{40+2*s}:{41+2*s}], v3, s[12:15], 0 offen offset:{16*s}")
    for s in range(16):
        so = "0" if s < 2 else f"s{20+s//2}"
        e(f"buffer_load_dwordx2 v[{8+2*s}:{9+2*s}], v1, s[8:11], {so} offen offset:{2048*(s%2)}")
    e("s_lshl_b32 s3, s2, 10")
    e("s_add_u32 s16, s6, s3")
    e("s_addc_u32 s17, s7, 0")
    e("s_movk_i32 s18, 1024")
    e("s_mov_b32 s19, 0x20000")
    e("v_lshlrev_b32 v4, 9, v2")
    e("v_bfe_u32 v5, v0, 1, 4")
    e("v_lshl_add_u32 v4, v5, 4, v4")
    e("v_lshrrev_b32 v5, 7, v0")
    e("v_lshl_add_u32 v4, v5, 3, v4")
    e("v_bfe_u32 v5, v0, 5, 2")
    e("v_lshl_add_u32 v4, v5, 1, v4")
    e("s_waitcnt vmcnt(16)")
    e("v_mov_b32 v72, v40")
    e("v_mov_b32 v73, v41")
    for s in range(1, 16):
        e(f"v_max_f32 v72, v72, v{40+2*s}")
        e(f"v_max_f32 v73, v73, v{41+2*s}")
    for s in range(16):
        e(f"v_sub_f32 v{40+2*s}, v{40+2*s}, v72")
        e(f"v_sub_f32 v{41+2*s}, v{41+2*s}, v73")
    for s in range(16):
        e(f"v_exp_f32 v{40+2*s}, v{40+2*s}")
        e(f"v_exp_f32 v{41+2*s}, v{41+2*s}")
    e("s_waitcnt vmcnt(0)")
    e("v_mov_b32 v74, v40")
    e("v_mov_b32 v75, v41")
    e("v_mul_f32 v76, v40, v8")
    e("v_mul_f32 v77, v41, v9")
    for s in range(1, 16):
        e(f"v_add_f32 v74, v74, v{40+2*s}")
        e(f"v_add_f32 v75, v75, v{41+2*s}")
        e(f"v_fmac_f32 v76, v{40+2*s}, v{8+2*s}")
        e(f"v_fmac_f32 v77, v{41+2*s}, v{9+2*s}")
    e("v_rcp_f32 v74, v74")
    e("v_rcp_f32 v75, v75")
    B.nop(1)
    e("v_mul_f32 v76, v76, v74")
    e("v_mul_f32 v77, v77, v75")
    e("v_cvt_pk_bf16_f32 v76, v76, v77")
    e("buffer_store_short v76, v4, s[16:19], 0 offen")
    e("buffer_store_short_d16_hi v76, v4, s[16:19], 0 offen offset:256")
    B.label("L_end2")
    e("s_endpgm")

    lines = [l for l in A.lines if l.strip() != "None"]
    out += "\n".join(lines) + "\n" + B.text()
    out += '.section .rodata,"a"\n'
    out += kdesc(k1, total, accum, 102 if stamps else 72)
    out += kdesc(k2, 80, 80, 40)
    return out

if __name__ == "__main__":
    NW = int(sys.argv[1]) if len(sys.argv) > 1 else 4
    nt = "nt" in sys.argv[2:]
    st = "stamps" in sys.argv[2:]
    sys.stdout.write(gen(NW, nt=nt, stamps=st))
```
